```python
import torch

def _softmax(x, axis=-1):
    return torch.softmax(x, dim=axis)

def _gelu(x):
    return torch.nn.functional.gelu(x, approximate='tanh')

def _silu(x):
    return torch.nn.functional.silu(x)

def _sigmoid(x):
    return torch.sigmoid(x)

def _layernorm(x, axis=-1, eps=1e-05):
    m = x.mean(dim=axis, keepdim=True)
    v = x.var(dim=axis, keepdim=True, unbiased=False)
    return (x - m) / torch.sqrt(v + eps)

def _scatter_add(tgt, idx, src, axis=0):
    return tgt.clone().index_add_(axis, idx, src)

def _segment_sum(src, seg, n):
    out = torch.zeros((n,) + src.shape[1:], dtype=src.dtype)
    return out.index_add_(0, seg, src)

def _pad(x, pw):
    flat = tuple((v for pair in reversed(pw) for v in pair))
    return torch.nn.functional.pad(x, flat)
kernel_name = 'standalone__mixer_gmlp__prompt'

def setup_inputs():

    _w = lambda a: (lambda t: t.to(torch.bfloat16) if t.is_floating_point() else t)(torch.as_tensor(a))
    B, S, D, F = (1, 2048, 640, 1536)
    Fh = F // 2
    return {'x': _w((lambda *s: torch.randn(*s, dtype=torch.bfloat16) * 0.05)(B, S, D)), 'w_in': _w((lambda *s: torch.randn(*s, dtype=torch.bfloat16) * 0.4)(D, 2 * Fh)), 'w_sp': _w(0.01 * (lambda *s: torch.randn(*s, dtype=torch.bfloat16) * 0.4)(S, S)), 'b_sp': _w(1.0 + 0.01 * (lambda *s: torch.randn(*s, dtype=torch.bfloat16) * 0.05)(S)), 'w_out': _w((lambda *s: torch.randn(*s, dtype=torch.bfloat16) * 0.05)(Fh, D))}

def reference(x, w_in, w_sp, b_sp, w_out):
    B, S, D = x.shape
    F = w_in.shape[-1]
    Fh = F // 2
    z = _gelu(torch.einsum('bsd,df->bsf', x, w_in))
    z1 = z[..., :Fh].clone()
    z2 = _layernorm(z[..., Fh:], axis=-1)
    g = torch.einsum('ts,bsf->btf', w_sp, z2) + b_sp[None, :, None]
    return torch.einsum('bsf,fd->bsd', z1 * g, w_out)
```

```python
import re

TRANS = ("v_exp_f32", "v_log_f32", "v_rcp_f32", "v_rsq_f32", "v_sqrt_f32", "v_sin_f32", "v_cos_f32")
REG_RE = re.compile(r"\b([vas])(?:(\d+)\b|\[(\d+):(\d+)\])")


def regs_of(op):
    out = set()
    for m in REG_RE.finditer(op):
        k = m.group(1)
        if m.group(2) is not None:
            out.add((k, int(m.group(2))))
        else:
            out.update((k, r) for r in range(int(m.group(3)), int(m.group(4)) + 1))
    if re.search(r"\bvcc\b", op):
        out.update({("s", 106), ("s", 107)})
    if re.search(r"\bm0\b", op):
        out.add(("s", 124))
    if re.search(r"\bexec(_lo|_hi)?\b", op):
        out.update({("s", 126), ("s", 127)})
    return out


def split_ops(rest):
    ops, depth, cur = [], 0, ""
    for ch in rest:
        if ch == "[":
            depth += 1
        elif ch == "]":
            depth -= 1
        if ch == "," and depth == 0:
            ops.append(cur.strip())
            cur = ""
        else:
            cur += ch
    if cur.strip():
        ops.append(cur.strip())
    return ops


class Ins:
    def __init__(self, text):
        self.text = text
        t = text.split(";")[0].strip()
        self.real = bool(t) and not t.endswith(":") and not t.startswith(".")
        self.states = 1 if self.real else 0
        self.w, self.r = set(), set()
        self.kind = "none"
        self.mn = ""
        self.a = self.b = self.c = set()
        self.dpp = self.lds_dma = self.wide_store = False
        if not self.real:
            return
        parts = t.split(None, 1)
        mn = self.mn = parts[0]
        ops = split_ops(parts[1]) if len(parts) > 1 else []
        R = [regs_of(o) for o in ops]
        allr = lambda lst: set().union(*lst) if lst else set()
        if mn == "s_nop":
            self.kind = "nop"
            self.states = int(ops[0], 0) + 1
        elif mn.startswith("v_mfma"):
            self.kind = "mfma"
            self.w, self.a, self.b, self.c = R[0], R[1], R[2], R[3]
            self.r = self.a | self.b | self.c
            self.passes = 8 if "32x32" in mn else 4
        elif mn.startswith("v_"):
            self.kind = "valu"
            self.dpp = "_dpp" in mn or "quad_perm" in t or "row_" in t
            if mn.startswith("v_permlane"):
                self.w = R[0] | R[1]
                self.r = R[0] | R[1]
            elif mn.startswith("v_add_co") or mn.startswith("v_addc_co"):
                self.w = R[0] | R[1]
                self.r = allr(R[2:])
            else:
                self.w = R[0]
                self.r = allr(R[1:])
                if mn.startswith(("v_fmac", "v_writelane")) or self.dpp:
                    self.r |= R[0]
        elif mn.startswith("ds_"):
            self.kind = "ds"
            if mn.startswith("ds_read"):
                self.w, self.r = R[0], allr(R[1:])
            else:
                self.r = allr(R)
        elif mn.startswith(("buffer_", "global_")):
            self.kind = "vmem"
            self.lds_dma = t.endswith(" lds")
            if "load" in mn and not self.lds_dma:
                self.w, self.r = R[0], allr(R[1:])
            else:
                self.r = allr(R)
                if mn.endswith(("x3", "x4")) and "store" in mn:
                    self.wide_store = True
                    self.data = R[0] if mn.startswith("buffer_") else R[1]
        elif mn.startswith("s_"):
            self.kind = "salu"
            if mn.startswith(("s_cmp", "s_cbranch", "s_branch", "s_waitcnt", "s_barrier", "s_endpgm", "s_sleep", "s_setprio")):
                self.r = allr(R)
            else:
                self.w, self.r = (R[0] if R else set()), allr(R[1:])


def vec(s):
    return {x for x in s if x[0] in "va"}


def sca(s):
    return {x for x in s if x[0] == "s"}


def need(p, c):
    n = 0
    if p.kind == "valu":
        wv, ws = vec(p.w), sca(p.w)
        if c.kind == "mfma" and wv & c.r:
            n = max(n, 2)
        if c.kind == "valu":
            if p.mn.replace("_e32", "").replace("_e64", "") in TRANS and wv & c.r:
                n = max(n, 1)
            if (c.dpp or c.mn.startswith("v_permlane")) and wv & c.r:
                n = max(n, 2)
            if c.mn.startswith(("v_readfirstlane", "v_readlane")) and wv & c.r:
                n = max(n, 1)
            if ws & c.r:
                n = max(n, 4 if c.mn.startswith(("v_readlane", "v_writelane")) else 2)
        if c.kind == "vmem" and ws & c.r:
            n = max(n, 5)
    if p.kind == "mfma":
        far = {4: 8, 8: 12}[p.passes]
        if c.kind == "mfma":
            if p.w & (c.a | c.b):
                n = max(n, far)
            if p.w & c.c and p.w != c.c:
                n = max(n, far - 2)
        elif c.kind in ("valu", "ds", "vmem"):
            if p.w & (c.r | c.w):
                n = max(n, far)
            if c.kind == "valu" and p.c & c.w:
                n = max(n, p.passes - 1)
    if p.kind == "salu" and ("s", 124) in p.w and c.lds_dma:
        n = max(n, 1)
    if p.wide_store and p.data & c.w:
        n = max(n, 2)
    return n


def fix_hazards(lines):
    out = []
    added = 0
    for text in lines:
        c = Ins(text)
        if c.real:
            dist, short = 0, 0
            for p in reversed(out):
                if dist >= 12:
                    break
                if p.real:
                    short = max(short, need(p, c) - dist)
                dist += p.states
            if short > 0:
                out.append(Ins(f"s_nop {short - 1}"))
                added += 1
        out.append(c)
    return [i.text for i in out], added


class Em:
    def __init__(self):
        self.lines = []
        self.nvm = self.nds = 0
        self.vm_done = self.ds_done = 0
        self.tok = {}

    def a(self, text):
        self.lines.append(text)

    def vm(self, text, name=None):
        self.lines.append(text)
        self.nvm += 1
        if name is not None:
            self.tok[name] = ("vm", self.nvm)

    def ds(self, text, name=None):
        self.lines.append(text)
        self.nds += 1
        if name is not None:
            self.tok[name] = ("ds", self.nds)

    def wait(self, *names):
        v = d = 0
        for name in names:
            kind, idx = self.tok[name]
            if kind == "vm":
                v = max(v, idx)
            else:
                d = max(d, idx)
        parts = []
        if v > self.vm_done:
            n = min(self.nvm - v, 63)
            parts.append(f"vmcnt({n})")
            self.vm_done = self.nvm - n
        if d > self.ds_done:
            n = min(self.nds - d, 15)
            parts.append(f"lgkmcnt({n})")
            self.ds_done = self.nds - n
        if parts:
            self.lines.append("s_waitcnt " + " ".join(parts))

    def drain(self, vm=False, ds=False):
        parts = []
        if vm:
            parts.append("vmcnt(0)")
            self.vm_done = self.nvm
        if ds:
            parts.append("lgkmcnt(0)")
            self.ds_done = self.nds
        self.lines.append("s_waitcnt " + " ".join(parts))

    def run(self, items):
        for it in items:
            if isinstance(it, str):
                self.a(it)
            elif isinstance(it, list):
                self.run(it)
            elif callable(it):
                it(self)
            elif it[0] == "vm":
                self.vm(*it[1:])
            elif it[0] == "ds":
                self.ds(*it[1:])
            elif it[0] == "wait":
                self.wait(*it[1:])
            else:
                raise ValueError(it)


def spread(main, *fillers):
    n = len(main)
    slots = [[] for _ in range(n + 1)]
    for f in fillers:
        lo, hi = 0.0, 1.0
        if isinstance(f, tuple):
            f, lo, hi = f
        m = len(f)
        for k, it in enumerate(f):
            pos = lo + (hi - lo) * (k + 0.5) / m
            slots[min(n, max(0, int(round(pos * n))))].append(it)
    out = []
    for k in range(n):
        out.extend(slots[k])
        out.append(main[k])
    out.extend(slots[n])
    return out
```

```python
import math
import struct
import sys

from emit import Em, fix_hazards, spread

NAME = "standalone__mixer_gmlp__prompt_kernel"

EPOCH, FLAG2, FLAG3, STATS, Z2N, HH, STAMPS, WS_BYTES = 0, 0x1000, 0x10000, 0x40000, 0x100000, 0x400000, 0x800000, 0x900000
WSLOT, NWS = 12288, 5
PBASE, PSIZE, NPS = 61440, 24576, 12
RB = 122880
LDS_BYTES = 163840
SPIN_MAX = 400000


def f32(x):
    return "0x%08x" % struct.unpack("<I", struct.pack("<f", x))[0]


def sr(b, n=2):
    return f"s[{b}:{b + n - 1}]"


def vr(b, n=4):
    return f"v[{b}:{b + n - 1}]"


def ar(b, n=4):
    return f"a[{b}:{b + n - 1}]"


X, WI, SP, WO, OUT, WS, BS = 4, 8, 12, 16, 20, 24, 28
sw, si, sj, stag, t0, t1, t2, scnt, sP, sWl = range(32, 42)
mOdd, mB1, sK1, c0, c1 = 42, 44, 46, 48, 50
sKx, sKw, sZ, sSb, sTile = 52, 62, 72, 80, 88
sil, sjl, sxr, sxc, sF2w, sF2r, sHw, sF3w, sF3r, sIW = range(92, 102)
sHr, sOb = 52, 62

vl, va, vb, vc = 0, 1, 2, 3
vXg, vXr, vWg, vWr, vSg = 4, 6, 8, 11, 13
vBias, vStatW, vStatR, vZw, vZr, vL16, vF128 = 16, 15, 18, 19, 20, 21, 22
vRw, vRr, vStamp = 23, 26, 27
vTag = 28
vOg, vOr, vOut = 4, 9, 11
XF, A2, A1, WB, TT = 32, 112, 136, 160, 232


def gen(cfg=None):
    cfg = dict(cfg or {})
    stamps = cfg.get("stamps", False)
    D2 = cfg.get("d2", 16)
    in_pol = cfg.get("in_pol", "")
    e = Em()
    a = e.a
    nst = [0]

    def stamp(tag=""):
        if not stamps:
            return []
        k = nst[0]
        nst[0] += 1
        cfg.setdefault("_names", []).append(tag)
        return [f"s_memtime {sr(c1)}", lambda em: em.drain(ds=True), f"v_writelane_b32 v{vStamp}, s{c1}, {k}"]

    a("s_cmp_ge_u32 s2, 256")
    a("s_cbranch_scc1 L_end")
    for reg, off in ((X, 0), (WI, 8), (WS, 56), (SP, 16), (BS, 24), (WO, 32), (OUT, 40)):
        a(f"s_load_dwordx2 {sr(reg)}, s[0:1], {off}")
    if stamps:
        a(f"s_memrealtime {sr(c0)}")
        a(f"s_memtime {sr(c1)}")
    a(f"v_lshrrev_b32 v{va}, 6, v0")
    a(f"v_and_b32 v{vl}, 63, v0")
    a(f"v_readfirstlane_b32 s{sw}, v{va}")
    a(f"s_and_b32 s{t0}, s2, 7")
    a(f"s_lshr_b32 s{t1}, s2, 3")
    a(f"s_lshr_b32 s{sxr}, s{t0}, 1")
    a(f"s_and_b32 s{sxc}, s{t0}, 1")
    a(f"s_lshr_b32 s{sil}, s{t1}, 2")
    a(f"s_and_b32 s{sjl}, s{t1}, 3")
    a(f"s_lshl3_add_u32 s{si}, s{sxr}, s{sil}")
    a(f"s_lshl2_add_u32 s{sj}, s{sxc}, s{sjl}")
    a(f"s_lshl2_add_u32 s{sIW}, s{si}, s{sw}")
    a(f"s_mul_i32 s{t0}, s{sjl}, 3")
    a(f"s_add_u32 s{t0}, s{t0}, s{sil}")
    a(f"s_lshl1_add_u32 s{t0}, s{sxr}, s{t0}")
    a(f"s_mul_i32 s{t1}, s{t0}, 205")
    a(f"s_lshr_b32 s{t1}, s{t1}, 11")
    a(f"s_mul_i32 s{t1}, s{t1}, 10")
    a(f"s_sub_u32 s{t0}, s{t0}, s{t1}")
    if cfg.get("norot"):
        a(f"s_mov_b32 s{t0}, 0")
    a(f"s_lshl_b32 s{sKx}, s{t0}, 7")
    a(f"s_mul_i32 s{sKw}, s{sKx}, 1536")

    def kstep(n):
        return [f"s_add_u32 s{sKx + n}, s{sKx + n - 1}, 128", f"s_cmp_eq_u32 s{sKx + n}, 1280",
                f"s_cselect_b32 s{sKx + n}, 0, s{sKx + n}", f"s_mul_i32 s{sKw + n}, s{sKx + n}, 1536"]

    e.run(kstep(1) + kstep(2))
    for reg, size in ((X, 2621440), (WI, 1966080)):
        a(f"s_mov_b32 s{reg + 2}, {size}")
        a(f"s_mov_b32 s{reg + 3}, 0x20000")
    a(f"s_mul_i32 s{sP}, s{sw}, {PSIZE}")
    a(f"s_add_u32 s{sP}, s{sP}, {PBASE}")
    a(f"s_mul_i32 s{sWl}, s{sw}, 3072")
    a(f"v_lshrrev_b32 v{va}, 4, v{vl}")
    a(f"v_and_b32 v{vb}, 7, v{vl}")
    a(f"v_xor_b32 v{vb}, v{vb}, v{va}")
    a(f"v_lshlrev_b32 v{vSg}, 4, v{vb}")
    a(f"v_xor_b32 v{vSg + 1}, 64, v{vSg}")
    a(f"v_lshrrev_b32 v{vc}, 3, v{vl}")
    a(f"s_mul_i32 s{t0}, s{sIW}, {16 * 1280}")
    a(f"v_mul_u32_u24 v{vb}, 1280, v{vc}")
    a(f"v_add3_u32 v{vXg}, v{vb}, v{vSg}, s{t0}")
    a(f"s_add_u32 s{t0}, s{t0}, {8 * 1280 - 1024}")
    a(f"v_add3_u32 v{vXg + 1}, v{vb}, v{vSg + 1}, s{t0}")
    a(f"s_mul_i32 s{t0}, s{sw}, {16 * 3072}")
    a(f"s_mul_i32 s{t1}, s{sj}, 192")
    a(f"s_add_u32 s{t0}, s{t0}, s{t1}")
    a(f"s_add_u32 s{t0}, s{t0}, 1536")
    for p in range(3):
        src = vl
        if p:
            a(f"v_add_u32 v{va}, {64 * p}, v{vl}")
            src = va
        a(f"v_mul_u32_u24 v{vb}, 171, v{src}")
        a(f"v_lshrrev_b32 v{vb}, 11, v{vb}")
        a(f"v_mad_i32_i24 v{va}, v{vb}, -12, v{src}")
        if p == 1:
            a(f"v_lshrrev_b32 v{vWg + p}, 2, v{vb}")
            a(f"v_and_b32 v{vWg + p}, 2, v{vWg + p}")
            a(f"v_xor_b32 v{va}, v{va}, v{vWg + p}")
        elif p == 2:
            a(f"v_xor_b32 v{va}, 2, v{va}")
        a(f"v_mul_u32_u24 v{vb}, 3072, v{vb}")
        a(f"v_lshl_add_u32 v{va}, v{va}, 4, v{vb}")
        if p:
            a(f"v_subrev_u32 v{va}, {1024 * p}, v{va}")
        a(f"v_add_u32 v{vWg + p}, s{t0}, v{va}")

    def XG(n):
        return [f"s_add_u32 m0, s{sP}, {n * 2048}",
                ("vm", f"buffer_load_dwordx4 v{vXg}, {sr(X, 4)}, s{sKx + n} offen{in_pol} lds"),
                ("vm", f"buffer_load_dwordx4 v{vXg + 1}, {sr(X, 4)}, s{sKx + n} offen offset:1024{in_pol} lds", f"X{n}")]

    def WG(g):
        out = []
        if g == 10:
            out.append([f"v_subrev_u32 v{vWg + p}, 1536, v{vWg + p}" for p in range(3)])
        for p in range(3):
            grp = [f"s_add_u32 m0, s{sWl}, {(g % NWS) * WSLOT}"]
            off = f" offset:{1024 * p}" if p else ""
            grp.append(("vm", f"buffer_load_dwordx4 v{vWg + p}, {sr(WI, 4)}, s{sKw + g % 10} offen{off}{in_pol} lds", f"W{g}" if p == 2 else None))
            out.append(grp)
        return out

    def WGflat(g):
        grp = WG(g)
        out = []
        first = True
        for x in grp:
            if isinstance(x[-1], tuple) and not first:
                out.append(x[1])
            else:
                out.extend(x)
                if isinstance(x[-1], tuple):
                    first = False
        return out

    def SG(un):
        nb, tl = divmod(un, 4)
        slot = (un + 10) % NPS
        pre = []
        if un >= NPS:
            pre = [("wait", f"SR{un - NPS}")]
        return pre + [f"s_add_u32 m0, s{sP}, {slot * 2048}", f"s_add_u32 s{t2}, s{sSb + nb}, s{sTile + tl}",
                      ("vm", f"buffer_load_dwordx4 v{vSg}, {sr(SP, 4)}, s{t2} offen{in_pol} lds"),
                      ("vm", f"buffer_load_dwordx4 v{vSg + 1}, {sr(SP, 4)}, s{t2} offen offset:1024{in_pol} lds", f"S{un}")]

    def SR(un):
        nb, tl = divmod(un, 4)
        slot = (un + 10) % NPS
        return [("wait", f"S{un}"),
                ("ds", f"ds_read_b128 {ar(((2 * nb) * 4 + tl) * 4)}, v{vXr} offset:{slot * 2048}"),
                ("ds", f"ds_read_b128 {ar(((2 * nb + 1) * 4 + tl) * 4)}, v{vXr + 1} offset:{slot * 2048}", f"SR{un}")]

    a("s_waitcnt lgkmcnt(0)")
    if stamps:
        a(f"v_writelane_b32 v{vStamp}, s{c0}, 62")
        a(f"v_writelane_b32 v{vStamp}, s{c1}, 0")
        nst[0] = 1
        cfg.setdefault("_names", []).append("start")
    a(f"s_load_dword s{stag}, {sr(WS)}, {EPOCH}")
    e.run(XG(0) + WGflat(0) + XG(1) + XG(2) + WGflat(1))

    for n in range(3, 10):
        e.run(kstep(n))
    for reg, size in ((SP, 8388608), (WO, 983040), (OUT, 2621440), (WS, WS_BYTES), (BS, 4096)):
        a(f"s_mov_b32 s{reg + 2}, {size}")
        a(f"s_mov_b32 s{reg + 3}, 0x20000")
    a(f"v_and_b32 v{va}, 15, v{vl}")
    a(f"s_lshl_b32 s{t0}, s{sIW}, 5")
    a(f"v_lshlrev_b32 v{vb}, 1, v{va}")
    e.vm(f"buffer_load_ushort v{vBias}, v{vb}, {sr(BS, 4)}, s{t0} offen", "bias")
    a(f"s_lshl_b32 s{t0}, s{si}, 18")
    a(f"s_lshl_b32 s{t1}, s{sw}, 10")
    a(f"s_add_u32 s{t0}, s{t0}, s{t1}")
    a(f"v_lshlrev_b32 v{vb}, 12, v{vc}")
    a(f"v_add3_u32 v{vSg}, v{vb}, v{vSg}, s{t0}")
    a(f"s_add_u32 s{t0}, s{t0}, {8 * 4096 - 1024}")
    a(f"v_add3_u32 v{vSg + 1}, v{vb}, v{vSg + 1}, s{t0}")
    a(f"v_lshrrev_b32 v{vb}, 1, v{va}")
    a(f"v_lshrrev_b32 v{vc}, 4, v{vl}")
    a(f"v_xor_b32 v{vb}, v{vb}, v{vc}")
    a(f"v_lshlrev_b32 v{vb}, 4, v{vb}")
    a(f"v_lshl_add_u32 v{vb}, v{va}, 7, v{vb}")
    a(f"v_add_u32 v{vXr}, s{sP}, v{vb}")
    a(f"v_xor_b32 v{vXr + 1}, 64, v{vXr}")
    a(f"v_and_b32 v{vb}, 1, v{vc}")
    a(f"v_lshlrev_b32 v{vZw}, 16, v{vb}")
    a(f"v_lshl_add_u32 v{vZw}, v{va}, 4, v{vZw}")
    a(f"v_lshrrev_b32 v{va}, 5, v{vl}")
    a(f"v_lshl_add_u32 v{vZw}, v{va}, 8, v{vZw}")
    a(f"s_mul_i32 s{t0}, s{sj}, 393216")
    a(f"s_add_u32 s{t0}, s{t0}, {Z2N}")
    a(f"s_lshl_b32 s{t1}, s{sIW}, 9")
    a(f"s_add_u32 s{t1}, s{t1}, s{t0}")
    a(f"v_add_u32 v{vZw}, s{t1}, v{vZw}")
    a(f"v_lshlrev_b32 v{vL16}, 4, v{vl}")
    a(f"v_lshlrev_b32 v{vF128}, 7, v{vl}")
    a(f"s_lshl_b32 s{t1}, s{sw}, 14")
    a(f"s_add_u32 s{t1}, s{t1}, s{t0}")
    a(f"v_add_u32 v{vZr}, s{t1}, v{vL16}")
    a(f"v_bfe_u32 v{va}, v{vl}, 2, 2")
    a(f"v_lshl_add_u32 v{vWr}, v{vc}, 3, v{va}")
    a(f"v_mul_u32_u24 v{vWr}, 192, v{vWr}")
    a(f"v_and_b32 v{vStatW}, 3, v{vl}")
    a(f"v_lshl_add_u32 v{vWr}, v{vStatW}, 3, v{vWr}")
    a(f"v_lshlrev_b32 v{vb}, 5, v{vb}")
    a(f"v_sub_u32 v{vWr + 1}, v{vWr}, v{vb}")
    a(f"v_add_u32 v{vWr}, v{vWr}, v{vb}")
    a(f"v_lshl_add_u32 v{vStatW}, v{vc}, 2, v{vStatW}")
    a(f"v_lshlrev_b32 v{vStatW}, 4, v{vStatW}")
    a(f"s_lshl_b32 s{t0}, s{sIW}, 11")
    a(f"s_add_u32 s{t0}, s{t0}, {STATS}")
    a(f"v_lshl_add_u32 v{vStatR}, v{va}, 8, v{vStatW}")
    a(f"v_add_u32 v{vStatR}, s{t0}, v{vStatR}")
    a(f"s_lshl_b32 s{t1}, s{sj}, 8")
    a(f"s_add_u32 s{t0}, s{t0}, s{t1}")
    a(f"v_add_u32 v{vStatW}, s{t0}, v{vStatW}")
    a(f"s_lshl1_add_u32 s{t0}, s{sjl}, s{sil}")
    a(f"s_add_u32 s{t0}, s{t0}, s{sxc}")
    if cfg.get("norot"):
        a(f"s_mov_b32 s{t0}, 0")
    for nb in range(8):
        a(f"s_add_u32 s{t1}, s{t0}, {nb}")
        a(f"s_and_b32 s{t1}, s{t1}, 7")
        a(f"s_lshl_b32 s{sZ + nb}, s{t1}, 11")
        a(f"s_lshl_b32 s{sSb + nb}, s{t1}, 7")
    for tl in range(4):
        a(f"s_add_u32 s{t1}, s{sw}, {tl}")
        a(f"s_and_b32 s{t1}, s{t1}, 3")
        a(f"s_lshl_b32 s{sTile + tl}, s{t1}, 16")
        a(f"s_mul_i32 s{t1}, s{t1}, 3072")
        a(f"s_add_u32 s{t1}, s{t1}, {RB + max(tl - 1, 0) * 1024}")
        a(f"v_add_u32 v{vRw + tl - 1 if tl else vRr}, s{t1}, v{vL16}")
    a(f"s_lshl_b32 s{t0}, s{sj}, 5")
    a(f"s_add_u32 s{t1}, s{t0}, s{si}")
    a(f"s_lshl_b32 s{t1}, s{t1}, 7")
    a(f"s_add_u32 s{sF2w}, s{t1}, {FLAG2}")
    a(f"s_cmp_eq_u32 s{sw}, 0")
    a(f"s_cselect_b32 s{sF2w}, s{sF2w}, {WS_BYTES}")
    a(f"s_lshl3_add_u32 s{t1}, s{sw}, s{t0}")
    a(f"s_lshl_b32 s{t1}, s{t1}, 7")
    a(f"s_add_u32 s{sF2r}, s{t1}, {FLAG2}")
    a(f"s_lshl_b32 s{t1}, s{sIW}, 10")
    a(f"s_add_u32 s{sF3r}, s{t1}, {FLAG3}")
    a(f"s_lshl_b32 s{t1}, s{sj}, 7")
    a(f"s_add_u32 s{sF3w}, s{t1}, s{sF3r}")
    a(f"s_lshl3_add_u32 s{t1}, s{sIW}, s{sj}")
    a(f"s_mul_i32 s{t1}, s{t1}, 3072")
    a(f"s_add_u32 s{sHw}, s{t1}, {HH}")
    a(f"s_mov_b32 s{mOdd}, 0xaaaaaaaa")
    a(f"s_mov_b32 s{mOdd + 1}, 0xaaaaaaaa")
    a(f"s_mov_b32 s{mB1}, 0xcccccccc")
    a(f"s_mov_b32 s{mB1 + 1}, 0xcccccccc")
    log2e = math.log2(math.e)
    k0 = -2.0 * math.sqrt(2.0 / math.pi) * log2e
    k1 = k0 * 0.044715
    a(f"s_mov_b32 s{sK1}, {f32(k1)}")
    a(f"s_mov_b32 s{sK1 + 1}, {f32(k1)}")
    a("s_waitcnt lgkmcnt(0)")
    a(f"s_mul_i32 s{stag}, s{stag}, 1664525")
    a(f"s_add_u32 s{stag}, s{stag}, 1013904223")
    for k in range(4):
        a(f"v_mov_b32 v{vTag + k}, s{stag}")
    a(f"v_mov_b32 v{vb}, {f32(k0)}")
    a(f"v_mov_b32 v{vc}, {f32(k0)}")
    e.run(stamp("setup"))

    def wbuf(g, ks):
        return WB + 24 * ((2 * g + ks) % 3)

    def reads(g, ks):
        out = []
        if g < 10:
            out.append(("ds", f"ds_read_b128 {vr(XF + 8 * g + 4 * ks)}, v{vXr + ks} offset:{g * 2048}"))
        for u in range(6):
            for half in range(2):
                off = (g % NWS) * WSLOT + ks * 6144 + half * 768 + 32 * u
                out.append(("ds", f"ds_read_b64_tr_b16 {vr(wbuf(g, ks) + 4 * u + 2 * half, 2)}, v{vWr + (u & 1)} offset:{off}",
                            f"R{g}_{ks}_{u}" if half else None))
        return out

    def mfmas(g, ks):
        out = []
        acc = A2 if g < 10 else A1
        xf = vr(XF + 8 * (g % 10) + 4 * ks)
        for u in range(6):
            wf = vr(wbuf(g, ks) + 4 * u)
            c = "0" if (g % 10 == 0 and ks == 0) else vr(acc + 4 * u)
            ops = (xf, wf) if g < 10 else (wf, xf)
            m = f"v_mfma_f32_16x16x32_bf16 {vr(acc + 4 * u)}, {ops[0]}, {ops[1]}, {c}"
            out.append([("wait", f"R{g}_{ks}_{min(u | 1, 5)}"), m] if u % 2 == 0 else m)
        return out

    def stage(g, fill, pre_barrier=(), post_barrier=()):
        e.wait(f"W{g}")
        e.run(list(pre_barrier))
        a("s_barrier")
        e.run(list(post_barrier))
        h = (len(fill) + 1) // 2
        first = mfmas(g - 1, 1) if g % 10 else []
        e.run(spread(reads(g, 0), (first, 0.1, 1.0), fill[:h]))
        e.run(spread(reads(g, 1), (mfmas(g, 0), 0.25, 1.1), fill[h:]))
        if g % 10 == 9:
            e.run(mfmas(g, 1))

    for g in range(10):
        fill = WG(g + 2)
        if g + 3 < 10:
            fill = fill + [XG(g + 3)]
        stage(g, fill)
        if g in (0, 4):
            e.run(stamp(f"z2 stage {g}"))
    a("s_barrier")
    e.run(stamp("z2 gemm done"))

    def gelu(acc):
        P = range(12)
        y = lambda p: vr(acc + 2 * p, 2)
        t = lambda p: vr(TT + 2 * p, 2)
        out = [f"v_pk_mul_f32 {t(p)}, {y(p)}, {y(p)}" for p in P]
        out += [f"v_pk_fma_f32 {t(p)}, {t(p)}, {sr(sK1)}, {vr(vb, 2)}" for p in P]
        out += [f"v_pk_mul_f32 {t(p)}, {t(p)}, {y(p)}" for p in P]
        out += [f"v_exp_f32 v{TT + r}, v{TT + r}" for r in range(24)]
        out += [f"v_pk_add_f32 {t(p)}, {t(p)}, 1.0 op_sel_hi:[1,0]" for p in P]
        out += [f"v_rcp_f32 v{TT + r}, v{TT + r}" for r in range(24)]
        out += [f"v_pk_mul_f32 {y(p)}, {y(p)}, {t(p)}" for p in P]
        return out

    def dpp(op, d, s0, s1, ctl):
        return f"{op}_dpp v{d}, v{s0}, v{s1} {ctl} row_mask:0xf bank_mask:0xf"

    S_, Q_, U_ = TT, TT + 4, TT + 8
    GR = TT + 20
    st = []
    for h in range(2):
        st.append(f"v_pk_add_f32 {vr(S_ + 2 * h, 2)}, {vr(A2 + 2 * h, 2)}, {vr(A2 + 4 + 2 * h, 2)}")
        st.append(f"v_pk_mul_f32 {vr(Q_ + 2 * h, 2)}, {vr(A2 + 2 * h, 2)}, {vr(A2 + 2 * h, 2)}")
    for u in range(1, 6):
        for h in range(2):
            z = vr(A2 + 4 * u + 2 * h, 2)
            if u > 1:
                st.append(f"v_pk_add_f32 {vr(S_ + 2 * h, 2)}, {vr(S_ + 2 * h, 2)}, {z}")
            st.append(f"v_pk_fma_f32 {vr(Q_ + 2 * h, 2)}, {z}, {z}, {vr(Q_ + 2 * h, 2)}")
    for k in range(4):
        st.append(f"v_cndmask_b32 v{U_ + 2 * k}, v{S_ + 2 * k + 1}, v{S_ + 2 * k}, {sr(mOdd)}")
    for k in range(4):
        st.append(f"v_cndmask_b32 v{U_ + 2 * k + 1}, v{S_ + 2 * k}, v{S_ + 2 * k + 1}, {sr(mOdd)}")
    for k in range(4):
        st.append(dpp("v_add_f32", S_ + k, U_ + 2 * k, U_ + 2 * k + 1, "quad_perm:[1,0,3,2]"))
    for k in range(2):
        st.append(f"v_cndmask_b32 v{U_ + 2 * k}, v{S_ + 2 * k + 1}, v{S_ + 2 * k}, {sr(mB1)}")
    for k in range(2):
        st.append(f"v_cndmask_b32 v{U_ + 2 * k + 1}, v{S_ + 2 * k}, v{S_ + 2 * k + 1}, {sr(mB1)}")
    st.append(f"v_mov_b32 v{GR + 1}, s{stag}")
    for k in range(2):
        st.append(dpp("v_add_f32", S_ + k, U_ + 2 * k, U_ + 2 * k + 1, "quad_perm:[2,3,0,1]"))
    st.append(f"v_mov_b32 v{GR + 3}, s{stag}")
    for k in range(2):
        st.append(dpp("v_add_f32", S_ + 2 + k, S_ + k, S_ + k, "row_ror:4"))
    for k in range(2):
        st.append(dpp("v_add_f32", GR + 2 * k, S_ + 2 + k, S_ + 2 + k, "row_ror:8"))
    e1_fill = WG(12) + [SG(0), SG(1), SG(2), SG(3)]
    e.run(spread(gelu(A2), (e1_fill, 0.35, 1.0)))
    e.run(st)
    a("s_mov_b32 exec_lo, 0x000f000f")
    a("s_mov_b32 exec_hi, 0x000f000f")
    e.vm(f"buffer_store_dwordx4 {vr(GR)}, v{vStatW}, {sr(WS, 4)}, 0 offen sc1")
    a("s_mov_b64 exec, -1")
    e.run(stamp("stats sent"))

    def poll(label, loads, check, exec_mask=None, first_issued=False):
        if exec_mask:
            a(f"s_mov_b64 exec, {exec_mask}")
        if not first_issued:
            e.run(loads)
        e.wait(label)
        a(f"s_mov_b32 s{scnt}, 0")
        a(f"L_{label}_chk:")
        e.run(check)
        a(f"s_cbranch_scc0 L_{label}_ok")
        a(f"s_add_u32 s{scnt}, s{scnt}, 1")
        a(f"s_cmp_lt_u32 s{scnt}, {SPIN_MAX}")
        a(f"s_cbranch_scc0 L_{label}_ok")
        for ld in loads:
            a(ld[1])
        a("s_waitcnt vmcnt(0)")
        a(f"s_branch L_{label}_chk")
        a(f"L_{label}_ok:")
        if exec_mask:
            a("s_mov_b64 exec, -1")

    sg_next, sr_next = [4], [0]

    def sp_fill(ng, nr):
        out = []
        for _ in range(max(ng, nr)):
            if nr > 0 and sr_next[0] < 32 and sr_next[0] < sg_next[0]:
                out.append(SR(sr_next[0]))
                sr_next[0] += 1
                nr -= 1
            if ng > 0 and sg_next[0] < 32 and sg_next[0] - sr_next[0] < NPS:
                out.append(SG(sg_next[0]))
                sg_next[0] += 1
                ng -= 1
        return out

    HA = cfg.get("h1_after", 3)
    FL = cfg.get("flag2_at", HA + 3)
    PA, PB = TT, TT + 4
    h1_loads = [("vm", f"buffer_load_dwordx4 {vr(PA)}, v{vStatR}, {sr(WS, 4)}, 0 offen sc1"),
                ("vm", f"buffer_load_dwordx4 {vr(PB)}, v{vStatR}, {sr(WS, 4)}, 0 offen offset:1024 sc1", "h1")]
    h1_check = [f"v_cmp_ne_u32 vcc, s{stag}, v{PA + 1}", f"v_cmp_ne_u32 {sr(c0)}, s{stag}, v{PA + 3}",
                f"s_or_b64 vcc, vcc, {sr(c0)}", f"v_cmp_ne_u32 {sr(c0)}, s{stag}, v{PB + 1}",
                f"s_or_b64 vcc, vcc, {sr(c0)}", f"v_cmp_ne_u32 {sr(c0)}, s{stag}, v{PB + 3}",
                f"s_or_b64 vcc, vcc, {sr(c0)}"]

    def normalize():
        m, q, rs, nb = TT + 8, TT + 9, TT + 12, TT + 16
        a(f"v_add_f32 v{m}, v{PA}, v{PB}")
        a(f"v_add_f32 v{q}, v{PA + 2}, v{PB + 2}")
        for ctl in ("row_ror:4", "row_ror:8"):
            a(dpp("v_add_f32", m, m, m, ctl))
            a(dpp("v_add_f32", q, q, q, ctl))
        a(f"v_mul_f32 v{m}, {f32(1.0 / 768)}, v{m}")
        a(f"v_mul_f32 v{q}, {f32(1.0 / 768)}, v{q}")
        a(f"v_fma_f32 v{q}, -v{m}, v{m}, v{q}")
        a(f"v_max_f32 v{q}, 0, v{q}")
        a(f"v_add_f32 v{q}, {f32(1e-5)}, v{q}")
        a(f"v_rsq_f32 v{q}, v{q}")
        a(f"v_mul_f32_e64 v{m}, -v{m}, v{q}")
        for r in range(4):
            a(f"v_mov_b32_dpp v{rs + r}, v{q} quad_perm:[{r},{r},{r},{r}] row_mask:0xf bank_mask:0xf")
        for r in range(4):
            a(f"v_mov_b32_dpp v{nb + r}, v{m} quad_perm:[{r},{r},{r},{r}] row_mask:0xf bank_mask:0xf")
        for F in range(3):
            for u in (2 * F, 2 * F + 1):
                for h in range(2):
                    z = vr(A2 + 4 * u + 2 * h, 2)
                    a(f"v_pk_fma_f32 {z}, {z}, {vr(rs + 2 * h, 2)}, {vr(nb + 2 * h, 2)}")
            d = A2 + 8 * F
            for k in range(4):
                a(f"v_cvt_pk_bf16_f32 v{d + k}, v{d + 2 * k}, v{d + 2 * k + 1}")
            a(f"s_mov_b32 s{t0}, {F * 131072}")
            a(f"v_permlane16_swap_b32 v{d}, v{d + 2}")
            a(f"v_permlane16_swap_b32 v{d + 1}, v{d + 3}")
            e.vm(f"buffer_store_dwordx4 {vr(d)}, v{vZw}, {sr(WS, 4)}, s{t0} offen sc1", f"z2n{F}")

    flag2 = ["s_mov_b64 exec, 0xff",
             ("vm", f"buffer_store_dwordx4 {vr(vTag)}, v{vL16}, {sr(WS, 4)}, s{sF2w} offen sc1"),
             "s_mov_b64 exec, -1"]
    for g in range(10, 20):
        fill = WG(g + 3) if g + 3 < 20 else []
        fill = fill + sp_fill(2 if g - 10 != HA else 0, 2 if g > 10 else 0)
        if g - 10 == FL:
            stage(g, fill, pre_barrier=[("wait", "z2n2")], post_barrier=flag2 + stamp("flag2 sent"))
        else:
            stage(g, fill)
        if g - 10 == HA:
            e.run(stamp("h1 poll"))
            poll("h1", h1_loads, h1_check)
            e.run(stamp("h1 ok"))
            normalize()
            e.run(stamp("z2n sent"))
    e.run(stamp("z1 gemm done"))
    rest = []
    while sg_next[0] < 32 or sr_next[0] < 32:
        rest += sp_fill(1, 1 if (sg_next[0] - sr_next[0] >= 6 or sg_next[0] == 32) else 0)
    e.run(spread(gelu(A1), rest))
    e.wait("bias")
    a(f"v_lshlrev_b32 v{vBias}, 16, v{vBias}")
    e.run(stamp("z1 gelu done"))

    a(f"s_mul_i32 s{t0}, s{sj}, 160")
    for p in range(5):
        src = vl
        if p:
            a(f"v_add_u32 v{va}, {64 * p}, v{vl}")
            src = va
        a(f"v_mul_u32_u24 v{vb}, 205, v{src}")
        a(f"v_lshrrev_b32 v{vb}, 11, v{vb}")
        a(f"v_mad_i32_i24 v{va}, v{vb}, -10, v{src}")
        a(f"v_mul_u32_u24 v{vb}, 1280, v{vb}")
        a(f"v_lshl_add_u32 v{va}, v{va}, 4, v{vb}")
        if p == 2:
            e.wait("SR31")
        if p % 4:
            a(f"v_subrev_u32 v{va}, {1024 * p}, v{va}")
        a(f"v_add_u32 v{vOg + p}, s{t0}, v{va}")
    a(f"v_lshrrev_b32 v{va}, 2, v{vl}")
    a(f"v_mul_u32_u24 v{va}, 160, v{va}")
    a(f"v_and_b32 v{vb}, 3, v{vl}")
    a(f"v_mad_u32_u24 v{vOr}, v{vb}, 40, v{va}")
    a(f"v_add_u32 v{vOr + 1}, 61440, v{vOr}")
    a(f"v_and_b32 v{va}, 15, v{vl}")
    a(f"v_mul_u32_u24 v{va}, 1280, v{va}")
    a(f"v_lshrrev_b32 v{vb}, 4, v{vl}")
    a(f"v_mad_u32_u24 v{va}, v{vb}, 40, v{va}")
    a(f"s_mul_i32 s{t1}, s{sIW}, {16 * 1280}")
    a(f"s_add_u32 s{t0}, s{t0}, s{t1}")
    a(f"v_add_u32 v{vOut}, s{t0}, v{va}")
    a(f"s_lshl1_add_u32 s{t0}, s{sjl}, s{sxc}")
    if cfg.get("norot"):
        a(f"s_mov_b32 s{t0}, 0")
    a(f"s_mul_i32 s{t2}, s{sIW}, 24576")
    a(f"s_add_u32 s{t2}, s{t2}, {HH}")
    for m in range(8):
        a(f"s_add_u32 s{t1}, s{t0}, {m}")
        a(f"s_and_b32 s{t1}, s{t1}, 7")
        a(f"s_mul_i32 s{t1}, s{t1}, 3072")
        a(f"s_add_u32 s{sHr + m}, s{t1}, s{t2}")
    a(f"s_lshl1_add_u32 s{t0}, s{sw}, s{t0}")
    for mm in range(2):
        a(f"s_add_u32 s{t1}, s{t0}, {mm}")
        a(f"s_and_b32 s{t1}, s{t1}, 7")
        a(f"s_mul_i32 s{sOb + mm}, s{t1}, {96 * 1280}")
    a(f"s_mul_i32 s{sOb + 2}, s{sw}, {6 * 5120}")

    e.run(stamp("h2 poll"))
    h2_loads = [("vm", f"buffer_load_dword v{va}, v{vF128}, {sr(WS, 4)}, s{sF2r} offen sc1", "h2")]
    h2_check = [f"v_cmp_ne_u32 vcc, s{stag}, v{va}", "s_cmp_lg_u64 vcc, 0"]
    poll("h2", h2_loads, h2_check, exec_mask="0xff")
    e.run(stamp("h2 ok"))
    ZB, AC, RT, HP = XF, WB, WB + 32, WB + 44

    def zload(x):
        u, n = divmod(x, 16)
        out = []
        if n == 0 and u:
            out.append(f"v_add_u32 v{vZr}, 0x10000, v{vZr}")
        off = " offset:1024" if n & 1 else ""
        out.append(("vm", f"buffer_load_dwordx4 {vr(ZB + 4 * (x % D2))}, v{vZr}, {sr(WS, 4)}, s{sZ + n // 2} offen{off} sc1", f"Z{x}"))
        return out

    def red_write(u):
        acc = AC + 16 * (u & 1)
        return [("ds", f"ds_write_b128 v{vRw + tl - 1}, {vr(acc + 4 * tl)} offset:{(u & 1) * 12288}", f"RW{u}") for tl in (1, 2, 3)]

    def red_sync(u):
        return [[("wait", f"RW{u}"), "s_barrier"]] + \
               [("ds", f"ds_read_b128 {vr(RT + 4 * k)}, v{vRr} offset:{(u & 1) * 12288 + 1024 * k}", f"RR{u}") for k in range(3)]

    def gate(u):
        acc = AC + 16 * (u & 1)
        out = []
        for h in range(2):
            out.append(f"v_pk_add_f32 {vr(acc + 2 * h, 2)}, {vr(acc + 2 * h, 2)}, {vr(vBias, 2)} op_sel_hi:[1,0]")
        for k in range(3):
            for h in range(2):
                ins = f"v_pk_add_f32 {vr(acc + 2 * h, 2)}, {vr(acc + 2 * h, 2)}, {vr(RT + 4 * k + 2 * h, 2)}"
                out.append([("wait", f"RR{u}"), ins] if k == 0 and h == 0 else ins)
        for h in range(2):
            out.append(f"v_pk_mul_f32 {vr(acc + 2 * h, 2)}, {vr(acc + 2 * h, 2)}, {vr(A1 + 4 * u + 2 * h, 2)}")
        hp = HP + 4 * ((u >> 1) & 1)
        for h in range(2):
            out.append(f"v_cvt_pk_bf16_f32 v{hp + 2 * (u & 1) + h}, v{acc + 2 * h}, v{acc + 2 * h + 1}")
        if u & 1:
            off = f" offset:{1024 * (u >> 1)}" if u >> 1 else ""
            out.append(("vm", f"buffer_store_dwordx4 {vr(hp)}, v{vL16}, {sr(WS, 4)}, s{sHw} offen{off} sc1", f"hs{u >> 1}"))
        return out

    def OG(b):
        mm, F = divmod(b, 3)
        out = []
        for p in range(5):
            grp = []
            if p == 0:
                grp.append(f"s_add_u32 s{t2}, s{sOb + mm}, {F * 32 * 1280}")
            grp.append(f"s_add_u32 m0, s{sOb + 2}, {b * 5120 + (4096 if p == 4 else 0)}")
            off = f" offset:{1024 * p}" if p % 4 else ""
            grp.append(("vm", f"buffer_load_dwordx4 v{vOg + p}, {sr(WO, 4)}, s{t2} offen{off}{in_pol} lds", f"O{b}" if p == 4 else None))
            out.append(grp)
        return out

    for x in range(D2 - 1):
        e.run(zload(x))
    a("s_barrier")
    epoch = [[f"s_or_b32 s{t0}, s2, s{sw}", f"s_cselect_b32 s{t0}, {WS_BYTES}, {EPOCH}", "s_mov_b64 exec, 1",
              ("vm", f"buffer_store_dword v{vTag}, v{vL16}, {sr(WS, 4)}, s{t0} offen sc1"), "s_mov_b64 exec, -1"]]
    for u in range(6):
        main = []
        for n in range(16):
            x = 16 * u + n
            for tl in range(4):
                acc = AC + 16 * (u & 1) + 4 * tl
                m = f"v_mfma_f32_16x16x32_bf16 {vr(acc)}, {vr(ZB + 4 * (x % D2))}, {ar((n * 4 + tl) * 4)}, {'0' if n == 0 else vr(acc)}"
                if tl == 0:
                    main.append([("wait", f"Z{x}"), m])
                elif tl == 1 and x + D2 - 1 < 96:
                    main.append([m] + zload(x + D2 - 1))
                else:
                    main.append(m)
        if u == 0:
            e.run(spread(main, (epoch, 0.3, 0.4)))
        else:
            e.run(spread(main, (red_write(u - 1), 0.14, 0.26), (red_sync(u - 1), 0.4, 0.5), (gate(u - 1), 0.6, 0.95)))
        if u in (0, 2):
            e.run(stamp(f"p2 u{u}"))
    e.run(stamp("p2 mfma done"))
    e.run(red_write(5) + red_sync(5) + gate(5))
    e.run(stamp("h sent"))
    e.run(OG(0))
    e.wait("hs2")
    a("s_mov_b64 exec, 0xff")
    e.vm(f"buffer_store_dwordx4 {vr(vTag)}, v{vL16}, {sr(WS, 4)}, s{sF3w} offen sc1")
    a("s_mov_b64 exec, -1")
    e.run(stamp("flag3 sent"))
    for b in range(1, 6):
        e.run(OG(b))
    h3_loads = [("vm", f"buffer_load_dword v{va}, v{vF128}, {sr(WS, 4)}, s{sF3r} offen sc1", "h3")]
    poll("h3", h3_loads, h2_check, exec_mask="0xff")
    e.run(stamp("h3 ok"))

    HF, OA, OB = XF, 128, 160
    for n in range(24):
        m, F = divmod(n, 3)
        off = f" offset:{1024 * F}" if F else ""
        e.vm(f"buffer_load_dwordx4 {vr(HF + 4 * n)}, v{vL16}, {sr(WS, 4)}, s{sHr + m} offen{off} sc1", f"H{n}")
        if n == 3:
            a("s_barrier")

    def oreg(n, et):
        return ar((n * 5 + et) * 4) if n < 12 else vr(OB + 20 * (n % 4) + 4 * et)

    def oreads(n):
        out = []
        for et in range(5):
            for half in range(2):
                off = (n % 12) * 5120 + half * 2560 + 8 * et
                dst = ar((n * 5 + et) * 4 + 2 * half, 2) if n < 12 else vr(OB + 20 * (n % 4) + 4 * et + 2 * half, 2)
                out.append(("ds", f"ds_read_b64_tr_b16 {dst}, v{vOr + n // 12} offset:{off}", f"OR{n}" if (et == 4 and half) else None))
        return out

    for n in range(3):
        e.run(oreads(n))
    for n in range(24):
        main = []
        for et in range(5):
            m = f"v_mfma_f32_16x16x32_bf16 {vr(OA + 4 * et)}, {oreg(n, et)}, {vr(HF + 4 * n)}, {'0' if n == 0 else vr(OA + 4 * et)}"
            main.append([("wait", f"H{n}", f"OR{n}"), m] if et == 0 else m)
        e.run(spread(main, (oreads(n + 3) if n + 3 < 24 else [], 0.2, 1.0)))
    e.run(stamp("p3 mfma done"))
    PK = OB
    for k in range(10):
        a(f"v_cvt_pk_bf16_f32 v{PK + k}, v{OA + 2 * k}, v{OA + 2 * k + 1}")
    opol = cfg.get("out_pol", "")
    e.vm(f"buffer_store_dwordx4 {vr(PK)}, v{vOut}, {sr(OUT, 4)}, 0 offen{opol}")
    e.vm(f"buffer_store_dwordx4 {vr(PK + 4)}, v{vOut}, {sr(OUT, 4)}, 0 offen offset:16{opol}")
    e.vm(f"buffer_store_dwordx2 {vr(PK + 8, 2)}, v{vOut}, {sr(OUT, 4)}, 0 offen offset:32{opol}")
    if stamps:
        e.drain(vm=True)
        e.run(stamp("out done"))
        a(f"s_memrealtime {sr(c0)}")
        a("s_waitcnt lgkmcnt(0)")
        a(f"v_writelane_b32 v{vStamp}, s{c0}, 63")
        a(f"s_getreg_b32 s{t0}, hwreg(HW_REG_XCC_ID, 0, 4)")
        a(f"v_writelane_b32 v{vStamp}, s{t0}, 61")
        a(f"s_lshl2_add_u32 s{t0}, s2, s{sw}")
        a(f"s_lshl_b32 s{t0}, s{t0}, 8")
        a(f"s_add_u32 s{t0}, s{t0}, {STAMPS}")
        a(f"v_lshlrev_b32 v{va}, 2, v{vl}")
        a(f"buffer_store_dword v{vStamp}, v{va}, {sr(WS, 4)}, s{t0} offen")
    a("L_end:")
    a("s_endpgm")

    body, added = fix_hazards(e.lines)
    head = open("standalone__mixer_gmlp__prompt.s.ref").read().split("; Override launch")[0]
    txt = head + f"; @launch grid=(256,1,1) block=(256,1,1) lds={LDS_BYTES}\n"
    txt += '.amdgcn_target "amdgcn-amd-amdhsa--gfx950"\n.text\n'
    txt += f".globl {NAME}\n.p2align 8\n.type {NAME},@function\n{NAME}:\n"
    txt += "\n".join(("" if l.endswith(":") else "    ") + l for l in body) + "\n"
    txt += f'.section .rodata,"a"\n.p2align 6\n.amdhsa_kernel {NAME}\n'
    txt += ("  .amdhsa_next_free_vgpr 512\n  .amdhsa_next_free_sgpr 102\n  .amdhsa_accum_offset 256\n"
            "  .amdhsa_group_segment_fixed_size 0\n  .amdhsa_kernarg_size 64\n  .amdhsa_user_sgpr_count 2\n"
            "  .amdhsa_user_sgpr_kernarg_segment_ptr 1\n  .amdhsa_system_sgpr_workgroup_id_x 1\n.end_amdhsa_kernel\n")
    return txt, cfg.get("_names", []), added


if __name__ == "__main__":
    cfg = eval(sys.argv[2]) if len(sys.argv) > 2 else {}
    txt, names, added = gen(cfg)
    open(sys.argv[1], "w").write(txt)
    print("lines", txt.count("\n"), "nops added", added)
```

```python
import math
import struct
import sys

from emit import Em, fix_hazards, spread

NAME = "standalone__mixer_gmlp__prompt_kernel"

EPOCH, FLAG2, FLAG3, STATS, Z2N, HH, STAMPS, WS_BYTES = 0, 0x1000, 0x10000, 0x40000, 0x100000, 0x400000, 0x800000, 0x900000
WSLOT, NWS = 12288, 5
PBASE, PSIZE, NPS = 61440, 24576, 12
RB = 122880
LDS_BYTES = 163840
SPIN_MAX = 400000


def f32(x):
    return "0x%08x" % struct.unpack("<I", struct.pack("<f", x))[0]


def sr(b, n=2):
    return f"s[{b}:{b + n - 1}]"


def vr(b, n=4):
    return f"v[{b}:{b + n - 1}]"


def ar(b, n=4):
    return f"a[{b}:{b + n - 1}]"


X, WI, SP, WO, OUT, WS, BS = 4, 8, 12, 16, 20, 24, 28
sw, si, sj, stag, t0, t1, t2, scnt, sP, sWl = range(32, 42)
mOdd, mB1, sK1, c0, c1 = 42, 44, 46, 48, 50
sKx, sKw, sZ, sSb, sTile = 52, 62, 72, 80, 88
sil, sjl, sxr, sxc, sF2w, sF2r, sHw, sF3w, sF3r, sIW = range(92, 102)
sHr, sOb = 52, 62

vl, va, vb, vc = 0, 1, 2, 3
vXg, vXr, vWg, vWr, vSg = 4, 6, 8, 11, 13
vBias, vStatW, vStatR, vZw, vZr, vL16, vF128 = 16, 15, 18, 19, 20, 21, 22
vRw, vRr, vStamp = 23, 26, 27
vTag = 28
vOg, vOr, vOut = 4, 9, 11
XF, A2, A1, WB, TT = 32, 112, 136, 160, 232


def gen(cfg=None):
    cfg = dict(cfg or {})
    stamps = cfg.get("stamps", False)
    D2 = cfg.get("d2", 16)
    in_pol = cfg.get("in_pol", "")
    e = Em()
    a = e.a
    nst = [0]

    probe = cfg.get("probe")

    def stamp(tag=""):
        if probe is not None and probe == tag:
            return [f"s_memrealtime {sr(c1)}", lambda em: em.drain(ds=True), f"v_writelane_b32 v{vStamp}, s{c1}, 1"]
        if not stamps:
            return []
        k = nst[0]
        nst[0] += 1
        cfg.setdefault("_names", []).append(tag)
        return [f"s_memrealtime {sr(c1)}", lambda em: em.drain(ds=True), f"v_writelane_b32 v{vStamp}, s{c1}, {k}"]

    a("s_cmp_ge_u32 s2, 256")
    a("s_cbranch_scc1 L_end")
    for reg, off in ((X, 0), (WI, 8), (WS, 56), (SP, 16), (BS, 24), (WO, 32), (OUT, 40)):
        a(f"s_load_dwordx2 {sr(reg)}, s[0:1], {off}")
    if stamps or probe is not None:
        a(f"s_memtime {sr(c0)}")
        a(f"s_memrealtime {sr(c1)}")
    a(f"v_lshrrev_b32 v{va}, 6, v0")
    a(f"v_and_b32 v{vl}, 63, v0")
    a(f"v_readfirstlane_b32 s{sw}, v{va}")
    a(f"s_and_b32 s{t0}, s2, 7")
    a(f"s_lshr_b32 s{t1}, s2, 3")
    a(f"s_lshr_b32 s{sxr}, s{t0}, 1")
    a(f"s_and_b32 s{sxc}, s{t0}, 1")
    a(f"s_lshr_b32 s{sil}, s{t1}, 2")
    a(f"s_and_b32 s{sjl}, s{t1}, 3")
    a(f"s_lshl3_add_u32 s{si}, s{sxr}, s{sil}")
    a(f"s_lshl2_add_u32 s{sj}, s{sxc}, s{sjl}")
    a(f"s_lshl2_add_u32 s{sIW}, s{si}, s{sw}")
    a(f"s_mul_i32 s{t0}, s{sjl}, 3")
    a(f"s_add_u32 s{t0}, s{t0}, s{sil}")
    a(f"s_lshl1_add_u32 s{t0}, s{sxr}, s{t0}")
    a(f"s_mul_i32 s{t1}, s{t0}, 205")
    a(f"s_lshr_b32 s{t1}, s{t1}, 11")
    a(f"s_mul_i32 s{t1}, s{t1}, 10")
    a(f"s_sub_u32 s{t0}, s{t0}, s{t1}")
    if cfg.get("norot"):
        a(f"s_mov_b32 s{t0}, 0")
    a(f"s_lshl_b32 s{sKx}, s{t0}, 7")
    a(f"s_mul_i32 s{sKw}, s{sKx}, 1536")

    def kstep(n):
        return [f"s_add_u32 s{sKx + n}, s{sKx + n - 1}, 128", f"s_cmp_eq_u32 s{sKx + n}, 1280",
                f"s_cselect_b32 s{sKx + n}, 0, s{sKx + n}", f"s_mul_i32 s{sKw + n}, s{sKx + n}, 1536"]

    e.run(kstep(1) + kstep(2))
    for reg, size in ((X, 2621440), (WI, 1966080)):
        a(f"s_mov_b32 s{reg + 2}, {size}")
        a(f"s_mov_b32 s{reg + 3}, 0x20000")
    a(f"s_mul_i32 s{sP}, s{sw}, {PSIZE}")
    a(f"s_add_u32 s{sP}, s{sP}, {PBASE}")
    a(f"s_mul_i32 s{sWl}, s{sw}, 3072")
    a(f"v_lshrrev_b32 v{va}, 4, v{vl}")
    a(f"v_and_b32 v{vb}, 7, v{vl}")
    a(f"v_xor_b32 v{vb}, v{vb}, v{va}")
    a(f"v_lshlrev_b32 v{vSg}, 4, v{vb}")
    a(f"v_xor_b32 v{vSg + 1}, 64, v{vSg}")
    a(f"v_lshrrev_b32 v{vc}, 3, v{vl}")
    a(f"s_mul_i32 s{t0}, s{sIW}, {16 * 1280}")
    a(f"v_mul_u32_u24 v{vb}, 1280, v{vc}")
    a(f"v_add3_u32 v{vXg}, v{vb}, v{vSg}, s{t0}")
    a(f"s_add_u32 s{t0}, s{t0}, {8 * 1280 - 1024}")
    a(f"v_add3_u32 v{vXg + 1}, v{vb}, v{vSg + 1}, s{t0}")
    a(f"s_mul_i32 s{t0}, s{sw}, {16 * 3072}")
    a(f"s_mul_i32 s{t1}, s{sj}, 192")
    a(f"s_add_u32 s{t0}, s{t0}, s{t1}")
    a(f"s_add_u32 s{t0}, s{t0}, 1536")
    for p in range(3):
        src = vl
        if p:
            a(f"v_add_u32 v{va}, {64 * p}, v{vl}")
            src = va
        a(f"v_mul_u32_u24 v{vb}, 171, v{src}")
        a(f"v_lshrrev_b32 v{vb}, 11, v{vb}")
        a(f"v_mad_i32_i24 v{va}, v{vb}, -12, v{src}")
        if p == 1:
            a(f"v_lshrrev_b32 v{vWg + p}, 2, v{vb}")
            a(f"v_and_b32 v{vWg + p}, 2, v{vWg + p}")
            a(f"v_xor_b32 v{va}, v{va}, v{vWg + p}")
        elif p == 2:
            a(f"v_xor_b32 v{va}, 2, v{va}")
        a(f"v_mul_u32_u24 v{vb}, 3072, v{vb}")
        a(f"v_lshl_add_u32 v{va}, v{va}, 4, v{vb}")
        if p:
            a(f"v_subrev_u32 v{va}, {1024 * p}, v{va}")
        a(f"v_add_u32 v{vWg + p}, s{t0}, v{va}")

    def XG(n):
        return [f"s_add_u32 m0, s{sP}, {n * 2048}",
                ("vm", f"buffer_load_dwordx4 v{vXg}, {sr(X, 4)}, s{sKx + n} offen{in_pol} lds"),
                ("vm", f"buffer_load_dwordx4 v{vXg + 1}, {sr(X, 4)}, s{sKx + n} offen offset:1024{in_pol} lds", f"X{n}")]

    def WG(g):
        out = []
        if g == 10:
            out.append([f"v_subrev_u32 v{vWg + p}, 1536, v{vWg + p}" for p in range(3)])
        for p in range(3):
            grp = [f"s_add_u32 m0, s{sWl}, {(g % NWS) * WSLOT}"]
            off = f" offset:{1024 * p}" if p else ""
            grp.append(("vm", f"buffer_load_dwordx4 v{vWg + p}, {sr(WI, 4)}, s{sKw + g % 10} offen{off}{in_pol} lds", f"W{g}" if p == 2 else None))
            out.append(grp)
        return out

    def WGflat(g):
        grp = WG(g)
        out = []
        first = True
        for x in grp:
            if isinstance(x[-1], tuple) and not first:
                out.append(x[1])
            else:
                out.extend(x)
                if isinstance(x[-1], tuple):
                    first = False
        return out

    def SG(un):
        nb, tl = divmod(un, 4)
        slot = (un + 10) % NPS
        pre = []
        if un >= NPS:
            pre = [("wait", f"SR{un - NPS}")]
        return pre + [f"s_add_u32 m0, s{sP}, {slot * 2048}", f"s_add_u32 s{t2}, s{sSb + nb}, s{sTile + tl}",
                      ("vm", f"buffer_load_dwordx4 v{vSg}, {sr(SP, 4)}, s{t2} offen{in_pol} lds"),
                      ("vm", f"buffer_load_dwordx4 v{vSg + 1}, {sr(SP, 4)}, s{t2} offen offset:1024{in_pol} lds", f"S{un}")]

    def SR(un):
        nb, tl = divmod(un, 4)
        slot = (un + 10) % NPS
        return [("wait", f"S{un}"),
                ("ds", f"ds_read_b128 {ar(((2 * nb) * 4 + tl) * 4)}, v{vXr} offset:{slot * 2048}"),
                ("ds", f"ds_read_b128 {ar(((2 * nb + 1) * 4 + tl) * 4)}, v{vXr + 1} offset:{slot * 2048}", f"SR{un}")]

    a("s_waitcnt lgkmcnt(0)")
    if probe is not None:
        a(f"v_writelane_b32 v{vStamp}, s{c1}, 0")
        a(f"v_writelane_b32 v{vStamp}, s{c1}, 1")
    if stamps:
        a(f"v_writelane_b32 v{vStamp}, s{c0}, 62")
        a(f"v_writelane_b32 v{vStamp}, s{c1}, 0")
        nst[0] = 1
        cfg.setdefault("_names", []).append("start")
    a(f"s_load_dword s{stag}, {sr(WS)}, {EPOCH}")
    e.run(XG(0) + WGflat(0) + XG(1) + XG(2) + WGflat(1))

    for n in range(3, 10):
        e.run(kstep(n))
    for reg, size in ((SP, 8388608), (WO, 983040), (OUT, 2621440), (WS, WS_BYTES), (BS, 4096)):
        a(f"s_mov_b32 s{reg + 2}, {size}")
        a(f"s_mov_b32 s{reg + 3}, 0x20000")
    a(f"v_and_b32 v{va}, 15, v{vl}")
    a(f"s_lshl_b32 s{t0}, s{sIW}, 5")
    a(f"v_lshlrev_b32 v{vb}, 1, v{va}")
    e.vm(f"buffer_load_ushort v{vBias}, v{vb}, {sr(BS, 4)}, s{t0} offen", "bias")
    a(f"s_lshl_b32 s{t0}, s{si}, 18")
    a(f"s_lshl_b32 s{t1}, s{sw}, 10")
    a(f"s_add_u32 s{t0}, s{t0}, s{t1}")
    a(f"v_lshlrev_b32 v{vb}, 12, v{vc}")
    a(f"v_add3_u32 v{vSg}, v{vb}, v{vSg}, s{t0}")
    a(f"s_add_u32 s{t0}, s{t0}, {8 * 4096 - 1024}")
    a(f"v_add3_u32 v{vSg + 1}, v{vb}, v{vSg + 1}, s{t0}")
    a(f"v_lshrrev_b32 v{vb}, 1, v{va}")
    a(f"v_lshrrev_b32 v{vc}, 4, v{vl}")
    a(f"v_xor_b32 v{vb}, v{vb}, v{vc}")
    a(f"v_lshlrev_b32 v{vb}, 4, v{vb}")
    a(f"v_lshl_add_u32 v{vb}, v{va}, 7, v{vb}")
    a(f"v_add_u32 v{vXr}, s{sP}, v{vb}")
    a(f"v_xor_b32 v{vXr + 1}, 64, v{vXr}")
    a(f"v_and_b32 v{vb}, 1, v{vc}")
    a(f"v_lshlrev_b32 v{vZw}, 16, v{vb}")
    a(f"v_lshl_add_u32 v{vZw}, v{va}, 4, v{vZw}")
    a(f"v_lshrrev_b32 v{va}, 5, v{vl}")
    a(f"v_lshl_add_u32 v{vZw}, v{va}, 8, v{vZw}")
    a(f"s_mul_i32 s{t0}, s{sj}, 393216")
    a(f"s_add_u32 s{t0}, s{t0}, {Z2N}")
    a(f"s_lshl_b32 s{t1}, s{sIW}, 9")
    a(f"s_add_u32 s{t1}, s{t1}, s{t0}")
    a(f"v_add_u32 v{vZw}, s{t1}, v{vZw}")
    a(f"v_lshlrev_b32 v{vL16}, 4, v{vl}")
    a(f"v_lshlrev_b32 v{vF128}, 7, v{vl}")
    a(f"s_lshl_b32 s{t1}, s{sw}, 14")
    a(f"s_add_u32 s{t1}, s{t1}, s{t0}")
    a(f"v_add_u32 v{vZr}, s{t1}, v{vL16}")
    a(f"v_bfe_u32 v{va}, v{vl}, 2, 2")
    a(f"v_lshl_add_u32 v{vWr}, v{vc}, 3, v{va}")
    a(f"v_mul_u32_u24 v{vWr}, 192, v{vWr}")
    a(f"v_and_b32 v{vStatW}, 3, v{vl}")
    a(f"v_lshl_add_u32 v{vWr}, v{vStatW}, 3, v{vWr}")
    a(f"v_lshlrev_b32 v{vb}, 5, v{vb}")
    a(f"v_sub_u32 v{vWr + 1}, v{vWr}, v{vb}")
    a(f"v_add_u32 v{vWr}, v{vWr}, v{vb}")
    a(f"v_lshl_add_u32 v{vStatW}, v{vc}, 2, v{vStatW}")
    a(f"v_lshlrev_b32 v{vStatW}, 4, v{vStatW}")
    a(f"s_lshl_b32 s{t0}, s{sIW}, 11")
    a(f"s_add_u32 s{t0}, s{t0}, {STATS}")
    a(f"v_lshl_add_u32 v{vStatR}, v{va}, 8, v{vStatW}")
    a(f"v_add_u32 v{vStatR}, s{t0}, v{vStatR}")
    a(f"s_lshl_b32 s{t1}, s{sj}, 8")
    a(f"s_add_u32 s{t0}, s{t0}, s{t1}")
    a(f"v_add_u32 v{vStatW}, s{t0}, v{vStatW}")
    a(f"s_lshl1_add_u32 s{t0}, s{sjl}, s{sil}")
    a(f"s_add_u32 s{t0}, s{t0}, s{sxc}")
    if cfg.get("norot"):
        a(f"s_mov_b32 s{t0}, 0")
    for nb in range(8):
        a(f"s_add_u32 s{t1}, s{t0}, {nb}")
        a(f"s_and_b32 s{t1}, s{t1}, 7")
        a(f"s_lshl_b32 s{sZ + nb}, s{t1}, 11")
        a(f"s_lshl_b32 s{sSb + nb}, s{t1}, 7")
    for tl in range(4):
        a(f"s_add_u32 s{t1}, s{sw}, {tl}")
        a(f"s_and_b32 s{t1}, s{t1}, 3")
        a(f"s_lshl_b32 s{sTile + tl}, s{t1}, 16")
        a(f"s_mul_i32 s{t1}, s{t1}, 3072")
        a(f"s_add_u32 s{t1}, s{t1}, {RB + max(tl - 1, 0) * 1024}")
        a(f"v_add_u32 v{vRw + tl - 1 if tl else vRr}, s{t1}, v{vL16}")
    a(f"s_lshl_b32 s{t0}, s{sj}, 5")
    a(f"s_add_u32 s{t1}, s{t0}, s{si}")
    a(f"s_lshl_b32 s{t1}, s{t1}, 7")
    a(f"s_add_u32 s{sF2w}, s{t1}, {FLAG2}")
    a(f"s_cmp_eq_u32 s{sw}, 0")
    a(f"s_cselect_b32 s{sF2w}, s{sF2w}, {WS_BYTES}")
    a(f"s_lshl3_add_u32 s{t1}, s{sw}, s{t0}")
    a(f"s_lshl_b32 s{t1}, s{t1}, 7")
    a(f"s_add_u32 s{sF2r}, s{t1}, {FLAG2}")
    a(f"s_lshl_b32 s{t1}, s{sIW}, 10")
    a(f"s_add_u32 s{sF3r}, s{t1}, {FLAG3}")
    a(f"s_lshl_b32 s{t1}, s{sj}, 7")
    a(f"s_add_u32 s{sF3w}, s{t1}, s{sF3r}")
    a(f"s_lshl3_add_u32 s{t1}, s{sIW}, s{sj}")
    a(f"s_mul_i32 s{t1}, s{t1}, 3072")
    a(f"s_add_u32 s{sHw}, s{t1}, {HH}")
    a(f"s_mov_b32 s{mOdd}, 0xaaaaaaaa")
    a(f"s_mov_b32 s{mOdd + 1}, 0xaaaaaaaa")
    a(f"s_mov_b32 s{mB1}, 0xcccccccc")
    a(f"s_mov_b32 s{mB1 + 1}, 0xcccccccc")
    log2e = math.log2(math.e)
    k0 = -2.0 * math.sqrt(2.0 / math.pi) * log2e
    k1 = k0 * 0.044715
    a(f"s_mov_b32 s{sK1}, {f32(k1)}")
    a(f"s_mov_b32 s{sK1 + 1}, {f32(k1)}")
    a("s_waitcnt lgkmcnt(0)")
    a(f"s_mul_i32 s{stag}, s{stag}, 1664525")
    a(f"s_add_u32 s{stag}, s{stag}, 1013904223")
    for k in range(4):
        a(f"v_mov_b32 v{vTag + k}, s{stag}")
    a(f"v_mov_b32 v{vb}, {f32(k0)}")
    a(f"v_mov_b32 v{vc}, {f32(k0)}")
    e.run(stamp("setup"))

    def wbuf(g, ks):
        return WB + 24 * ((2 * g + ks) % 3)

    def reads(g, ks):
        out = []
        if g < 10:
            out.append(("ds", f"ds_read_b128 {vr(XF + 8 * g + 4 * ks)}, v{vXr + ks} offset:{g * 2048}"))
        for u in range(6):
            for half in range(2):
                off = (g % NWS) * WSLOT + ks * 6144 + half * 768 + 32 * u
                out.append(("ds", f"ds_read_b64_tr_b16 {vr(wbuf(g, ks) + 4 * u + 2 * half, 2)}, v{vWr + (u & 1)} offset:{off}",
                            f"R{g}_{ks}_{u}" if half else None))
        return out

    def mfmas(g, ks):
        out = []
        acc = A2 if g < 10 else A1
        xf = vr(XF + 8 * (g % 10) + 4 * ks)
        for u in range(6):
            wf = vr(wbuf(g, ks) + 4 * u)
            c = "0" if (g % 10 == 0 and ks == 0) else vr(acc + 4 * u)
            ops = (xf, wf) if g < 10 else (wf, xf)
            m = f"v_mfma_f32_16x16x32_bf16 {vr(acc + 4 * u)}, {ops[0]}, {ops[1]}, {c}"
            out.append([("wait", f"R{g}_{ks}_{min(u | 1, 5)}"), m] if u % 2 == 0 else m)
        return out

    def stage(g, fill, pre_barrier=(), post_barrier=()):
        e.wait(f"W{g}")
        e.run(list(pre_barrier))
        a("s_barrier")
        e.run(list(post_barrier))
        h = (len(fill) + 1) // 2
        first = mfmas(g - 1, 1) if g % 10 else []
        e.run(spread(reads(g, 0), (first, 0.1, 1.0), fill[:h]))
        e.run(spread(reads(g, 1), (mfmas(g, 0), 0.25, 1.1), fill[h:]))
        if g % 10 == 9:
            e.run(mfmas(g, 1))

    for g in range(10):
        fill = WG(g + 2)
        if g + 3 < 10:
            fill = fill + [XG(g + 3)]
        stage(g, fill)
        if g in (0, 4):
            e.run(stamp(f"z2 stage {g}"))
    a("s_barrier")
    e.run(stamp("z2 gemm done"))

    def gelu(acc):
        P = range(12)
        y = lambda p: vr(acc + 2 * p, 2)
        t = lambda p: vr(TT + 2 * p, 2)
        out = [f"v_pk_mul_f32 {t(p)}, {y(p)}, {y(p)}" for p in P]
        out += [f"v_pk_fma_f32 {t(p)}, {t(p)}, {sr(sK1)}, {vr(vb, 2)}" for p in P]
        out += [f"v_pk_mul_f32 {t(p)}, {t(p)}, {y(p)}" for p in P]
        out += [f"v_exp_f32 v{TT + r}, v{TT + r}" for r in range(24)]
        out += [f"v_pk_add_f32 {t(p)}, {t(p)}, 1.0 op_sel_hi:[1,0]" for p in P]
        out += [f"v_rcp_f32 v{TT + r}, v{TT + r}" for r in range(24)]
        out += [f"v_pk_mul_f32 {y(p)}, {y(p)}, {t(p)}" for p in P]
        return out

    def dpp(op, d, s0, s1, ctl):
        return f"{op}_dpp v{d}, v{s0}, v{s1} {ctl} row_mask:0xf bank_mask:0xf"

    S_, Q_, U_ = TT, TT + 4, TT + 8
    GR = TT + 20
    st = []
    for h in range(2):
        st.append(f"v_pk_add_f32 {vr(S_ + 2 * h, 2)}, {vr(A2 + 2 * h, 2)}, {vr(A2 + 4 + 2 * h, 2)}")
        st.append(f"v_pk_mul_f32 {vr(Q_ + 2 * h, 2)}, {vr(A2 + 2 * h, 2)}, {vr(A2 + 2 * h, 2)}")
    for u in range(1, 6):
        for h in range(2):
            z = vr(A2 + 4 * u + 2 * h, 2)
            if u > 1:
                st.append(f"v_pk_add_f32 {vr(S_ + 2 * h, 2)}, {vr(S_ + 2 * h, 2)}, {z}")
            st.append(f"v_pk_fma_f32 {vr(Q_ + 2 * h, 2)}, {z}, {z}, {vr(Q_ + 2 * h, 2)}")
    for k in range(4):
        st.append(f"v_cndmask_b32 v{U_ + 2 * k}, v{S_ + 2 * k + 1}, v{S_ + 2 * k}, {sr(mOdd)}")
    for k in range(4):
        st.append(f"v_cndmask_b32 v{U_ + 2 * k + 1}, v{S_ + 2 * k}, v{S_ + 2 * k + 1}, {sr(mOdd)}")
    for k in range(4):
        st.append(dpp("v_add_f32", S_ + k, U_ + 2 * k, U_ + 2 * k + 1, "quad_perm:[1,0,3,2]"))
    for k in range(2):
        st.append(f"v_cndmask_b32 v{U_ + 2 * k}, v{S_ + 2 * k + 1}, v{S_ + 2 * k}, {sr(mB1)}")
    for k in range(2):
        st.append(f"v_cndmask_b32 v{U_ + 2 * k + 1}, v{S_ + 2 * k}, v{S_ + 2 * k + 1}, {sr(mB1)}")
    st.append(f"v_mov_b32 v{GR + 1}, s{stag}")
    for k in range(2):
        st.append(dpp("v_add_f32", S_ + k, U_ + 2 * k, U_ + 2 * k + 1, "quad_perm:[2,3,0,1]"))
    st.append(f"v_mov_b32 v{GR + 3}, s{stag}")
    for k in range(2):
        st.append(dpp("v_add_f32", S_ + 2 + k, S_ + k, S_ + k, "row_ror:4"))
    for k in range(2):
        st.append(dpp("v_add_f32", GR + 2 * k, S_ + 2 + k, S_ + 2 + k, "row_ror:8"))
    e1_fill = WG(12) + [SG(0), SG(1), SG(2), SG(3)]
    e.run(spread(gelu(A2), (e1_fill, 0.35, 1.0)))
    e.run(st)
    a("s_mov_b32 exec_lo, 0x000f000f")
    a("s_mov_b32 exec_hi, 0x000f000f")
    e.vm(f"buffer_store_dwordx4 {vr(GR)}, v{vStatW}, {sr(WS, 4)}, 0 offen sc1")
    a("s_mov_b64 exec, -1")
    e.run(stamp("stats sent"))

    def poll(label, loads, check, exec_mask=None, first_issued=False):
        if exec_mask:
            a(f"s_mov_b64 exec, {exec_mask}")
        if not first_issued:
            e.run(loads)
        e.wait(label)
        a(f"s_mov_b32 s{scnt}, 0")
        a(f"L_{label}_chk:")
        e.run(check)
        a(f"s_cbranch_scc0 L_{label}_ok")
        a(f"s_add_u32 s{scnt}, s{scnt}, 1")
        a(f"s_cmp_lt_u32 s{scnt}, {SPIN_MAX}")
        a(f"s_cbranch_scc0 L_{label}_ok")
        for ld in loads:
            a(ld[1])
        a("s_waitcnt vmcnt(0)")
        a(f"s_branch L_{label}_chk")
        a(f"L_{label}_ok:")
        if exec_mask:
            a("s_mov_b64 exec, -1")

    sg_next, sr_next = [4], [0]

    def sp_fill(ng, nr):
        out = []
        for _ in range(max(ng, nr)):
            if nr > 0 and sr_next[0] < 32 and sr_next[0] < sg_next[0]:
                out.append(SR(sr_next[0]))
                sr_next[0] += 1
                nr -= 1
            if ng > 0 and sg_next[0] < 32 and sg_next[0] - sr_next[0] < NPS:
                out.append(SG(sg_next[0]))
                sg_next[0] += 1
                ng -= 1
        return out

    HA = cfg.get("h1_after", 3)
    FL = cfg.get("flag2_at", HA + 3)
    PA, PB = TT, TT + 4
    h1_loads = [("vm", f"buffer_load_dwordx4 {vr(PA)}, v{vStatR}, {sr(WS, 4)}, 0 offen sc1"),
                ("vm", f"buffer_load_dwordx4 {vr(PB)}, v{vStatR}, {sr(WS, 4)}, 0 offen offset:1024 sc1", "h1")]
    h1_check = [f"v_cmp_ne_u32 vcc, s{stag}, v{PA + 1}", f"v_cmp_ne_u32 {sr(c0)}, s{stag}, v{PA + 3}",
                f"s_or_b64 vcc, vcc, {sr(c0)}", f"v_cmp_ne_u32 {sr(c0)}, s{stag}, v{PB + 1}",
                f"s_or_b64 vcc, vcc, {sr(c0)}", f"v_cmp_ne_u32 {sr(c0)}, s{stag}, v{PB + 3}",
                f"s_or_b64 vcc, vcc, {sr(c0)}"]

    def normalize():
        m, q, rs, nb = TT + 8, TT + 9, TT + 12, TT + 16
        a(f"v_add_f32 v{m}, v{PA}, v{PB}")
        a(f"v_add_f32 v{q}, v{PA + 2}, v{PB + 2}")
        for ctl in ("row_ror:4", "row_ror:8"):
            a(dpp("v_add_f32", m, m, m, ctl))
            a(dpp("v_add_f32", q, q, q, ctl))
        a(f"v_mul_f32 v{m}, {f32(1.0 / 768)}, v{m}")
        a(f"v_mul_f32 v{q}, {f32(1.0 / 768)}, v{q}")
        a(f"v_fma_f32 v{q}, -v{m}, v{m}, v{q}")
        a(f"v_max_f32 v{q}, 0, v{q}")
        a(f"v_add_f32 v{q}, {f32(1e-5)}, v{q}")
        a(f"v_rsq_f32 v{q}, v{q}")
        a(f"v_mul_f32_e64 v{m}, -v{m}, v{q}")
        for r in range(4):
            a(f"v_mov_b32_dpp v{rs + r}, v{q} quad_perm:[{r},{r},{r},{r}] row_mask:0xf bank_mask:0xf")
        for r in range(4):
            a(f"v_mov_b32_dpp v{nb + r}, v{m} quad_perm:[{r},{r},{r},{r}] row_mask:0xf bank_mask:0xf")
        for F in range(3):
            for u in (2 * F, 2 * F + 1):
                for h in range(2):
                    z = vr(A2 + 4 * u + 2 * h, 2)
                    a(f"v_pk_fma_f32 {z}, {z}, {vr(rs + 2 * h, 2)}, {vr(nb + 2 * h, 2)}")
            d = A2 + 8 * F
            for k in range(4):
                a(f"v_cvt_pk_bf16_f32 v{d + k}, v{d + 2 * k}, v{d + 2 * k + 1}")
            a(f"s_mov_b32 s{t0}, {F * 131072}")
            a(f"v_permlane16_swap_b32 v{d}, v{d + 2}")
            a(f"v_permlane16_swap_b32 v{d + 1}, v{d + 3}")
            e.vm(f"buffer_store_dwordx4 {vr(d)}, v{vZw}, {sr(WS, 4)}, s{t0} offen sc1", f"z2n{F}")

    flag2 = ["s_mov_b64 exec, 0xff",
             ("vm", f"buffer_store_dwordx4 {vr(vTag)}, v{vL16}, {sr(WS, 4)}, s{sF2w} offen sc1"),
             "s_mov_b64 exec, -1"]
    for g in range(10, 20):
        fill = WG(g + 3) if g + 3 < 20 else []
        fill = fill + sp_fill(2 if g - 10 != HA else 0, 2 if g > 10 else 0)
        if g - 10 == FL:
            stage(g, fill, pre_barrier=[("wait", "z2n2")], post_barrier=flag2 + stamp("flag2 sent"))
        else:
            stage(g, fill)
        if g - 10 == HA:
            e.run(stamp("h1 poll"))
            poll("h1", h1_loads, h1_check)
            e.run(stamp("h1 ok"))
            normalize()
            e.run(stamp("z2n sent"))
    e.run(stamp("z1 gemm done"))
    rest = []
    while sg_next[0] < 32 or sr_next[0] < 32:
        rest += sp_fill(1, 1 if (sg_next[0] - sr_next[0] >= 6 or sg_next[0] == 32) else 0)
    e.run(spread(gelu(A1), rest))
    e.wait("bias")
    a(f"v_lshlrev_b32 v{vBias}, 16, v{vBias}")
    e.run(stamp("z1 gelu done"))

    a(f"s_mul_i32 s{t0}, s{sj}, 160")
    for p in range(5):
        src = vl
        if p:
            a(f"v_add_u32 v{va}, {64 * p}, v{vl}")
            src = va
        a(f"v_mul_u32_u24 v{vb}, 205, v{src}")
        a(f"v_lshrrev_b32 v{vb}, 11, v{vb}")
        a(f"v_mad_i32_i24 v{va}, v{vb}, -10, v{src}")
        a(f"v_mul_u32_u24 v{vb}, 1280, v{vb}")
        a(f"v_lshl_add_u32 v{va}, v{va}, 4, v{vb}")
        if p == 2:
            e.wait("SR31")
        if p % 4:
            a(f"v_subrev_u32 v{va}, {1024 * p}, v{va}")
        a(f"v_add_u32 v{vOg + p}, s{t0}, v{va}")
    a(f"v_lshrrev_b32 v{va}, 2, v{vl}")
    a(f"v_mul_u32_u24 v{va}, 160, v{va}")
    a(f"v_and_b32 v{vb}, 3, v{vl}")
    a(f"v_mad_u32_u24 v{vOr}, v{vb}, 40, v{va}")
    a(f"v_add_u32 v{vOr + 1}, 61440, v{vOr}")
    a(f"v_and_b32 v{va}, 15, v{vl}")
    a(f"v_mul_u32_u24 v{va}, 1280, v{va}")
    a(f"v_lshrrev_b32 v{vb}, 4, v{vl}")
    a(f"v_mad_u32_u24 v{va}, v{vb}, 40, v{va}")
    a(f"s_mul_i32 s{t1}, s{sIW}, {16 * 1280}")
    a(f"s_add_u32 s{t0}, s{t0}, s{t1}")
    a(f"v_add_u32 v{vOut}, s{t0}, v{va}")
    a(f"s_lshl1_add_u32 s{t0}, s{sjl}, s{sxc}")
    if cfg.get("norot"):
        a(f"s_mov_b32 s{t0}, 0")
    a(f"s_mul_i32 s{t2}, s{sIW}, 24576")
    a(f"s_add_u32 s{t2}, s{t2}, {HH}")
    for m in range(8):
        a(f"s_add_u32 s{t1}, s{t0}, {m}")
        a(f"s_and_b32 s{t1}, s{t1}, 7")
        a(f"s_mul_i32 s{t1}, s{t1}, 3072")
        a(f"s_add_u32 s{sHr + m}, s{t1}, s{t2}")
    a(f"s_lshl1_add_u32 s{t0}, s{sw}, s{t0}")
    for mm in range(2):
        a(f"s_add_u32 s{t1}, s{t0}, {mm}")
        a(f"s_and_b32 s{t1}, s{t1}, 7")
        a(f"s_mul_i32 s{sOb + mm}, s{t1}, {96 * 1280}")
    a(f"s_mul_i32 s{sOb + 2}, s{sw}, {6 * 5120}")

    e.run(stamp("h2 poll"))
    h2_loads = [("vm", f"buffer_load_dword v{va}, v{vF128}, {sr(WS, 4)}, s{sF2r} offen sc1", "h2")]
    h2_check = [f"v_cmp_ne_u32 vcc, s{stag}, v{va}", "s_cmp_lg_u64 vcc, 0"]
    poll("h2", h2_loads, h2_check, exec_mask="0xff")
    e.run(stamp("h2 ok"))
    ZB, AC, RT, HP = XF, WB, WB + 32, WB + 44

    def zload(x):
        u, n = divmod(x, 16)
        out = []
        if n == 0 and u:
            out.append(f"v_add_u32 v{vZr}, 0x10000, v{vZr}")
        off = " offset:1024" if n & 1 else ""
        out.append(("vm", f"buffer_load_dwordx4 {vr(ZB + 4 * (x % D2))}, v{vZr}, {sr(WS, 4)}, s{sZ + n // 2} offen{off} sc1", f"Z{x}"))
        return out

    def red_write(u):
        acc = AC + 16 * (u & 1)
        return [("ds", f"ds_write_b128 v{vRw + tl - 1}, {vr(acc + 4 * tl)} offset:{(u & 1) * 12288}", f"RW{u}") for tl in (1, 2, 3)]

    def red_sync(u):
        return [[("wait", f"RW{u}"), "s_barrier"]] + \
               [("ds", f"ds_read_b128 {vr(RT + 4 * k)}, v{vRr} offset:{(u & 1) * 12288 + 1024 * k}", f"RR{u}") for k in range(3)]

    def gate(u):
        acc = AC + 16 * (u & 1)
        out = []
        for h in range(2):
            out.append(f"v_pk_add_f32 {vr(acc + 2 * h, 2)}, {vr(acc + 2 * h, 2)}, {vr(vBias, 2)} op_sel_hi:[1,0]")
        for k in range(3):
            for h in range(2):
                ins = f"v_pk_add_f32 {vr(acc + 2 * h, 2)}, {vr(acc + 2 * h, 2)}, {vr(RT + 4 * k + 2 * h, 2)}"
                out.append([("wait", f"RR{u}"), ins] if k == 0 and h == 0 else ins)
        for h in range(2):
            out.append(f"v_pk_mul_f32 {vr(acc + 2 * h, 2)}, {vr(acc + 2 * h, 2)}, {vr(A1 + 4 * u + 2 * h, 2)}")
        hp = HP + 4 * ((u >> 1) & 1)
        for h in range(2):
            out.append(f"v_cvt_pk_bf16_f32 v{hp + 2 * (u & 1) + h}, v{acc + 2 * h}, v{acc + 2 * h + 1}")
        if u & 1:
            off = f" offset:{1024 * (u >> 1)}" if u >> 1 else ""
            out.append(("vm", f"buffer_store_dwordx4 {vr(hp)}, v{vL16}, {sr(WS, 4)}, s{sHw} offen{off} sc1", f"hs{u >> 1}"))
        return out

    def OG(b):
        mm, F = divmod(b, 3)
        out = []
        for p in range(5):
            grp = []
            if p == 0:
                grp.append(f"s_add_u32 s{t2}, s{sOb + mm}, {F * 32 * 1280}")
            grp.append(f"s_add_u32 m0, s{sOb + 2}, {b * 5120 + (4096 if p == 4 else 0)}")
            off = f" offset:{1024 * p}" if p % 4 else ""
            grp.append(("vm", f"buffer_load_dwordx4 v{vOg + p}, {sr(WO, 4)}, s{t2} offen{off}{in_pol} lds", f"O{b}" if p == 4 else None))
            out.append(grp)
        return out

    for x in range(D2 - 1):
        e.run(zload(x))
    a("s_barrier")
    epoch = [[f"s_or_b32 s{t0}, s2, s{sw}", f"s_cselect_b32 s{t0}, {WS_BYTES}, {EPOCH}", "s_mov_b64 exec, 1",
              ("vm", f"buffer_store_dword v{vTag}, v{vL16}, {sr(WS, 4)}, s{t0} offen sc1"), "s_mov_b64 exec, -1"]]
    for u in range(6):
        main = []
        for n in range(16):
            x = 16 * u + n
            for tl in range(4):
                acc = AC + 16 * (u & 1) + 4 * tl
                m = f"v_mfma_f32_16x16x32_bf16 {vr(acc)}, {vr(ZB + 4 * (x % D2))}, {ar((n * 4 + tl) * 4)}, {'0' if n == 0 else vr(acc)}"
                if tl == 0:
                    main.append([("wait", f"Z{x}"), m])
                elif tl == 1 and x + D2 - 1 < 96:
                    main.append([m] + zload(x + D2 - 1))
                else:
                    main.append(m)
        if u == 0:
            e.run(spread(main, (epoch, 0.3, 0.4)))
        else:
            e.run(spread(main, (red_write(u - 1), 0.14, 0.26), (red_sync(u - 1), 0.4, 0.5), (gate(u - 1), 0.6, 0.95)))
        if u in (0, 2):
            e.run(stamp(f"p2 u{u}"))
    e.run(stamp("p2 mfma done"))
    e.run(red_write(5) + red_sync(5) + gate(5))
    e.run(stamp("h sent"))
    e.run(OG(0))
    e.wait("hs2")
    a("s_mov_b64 exec, 0xff")
    e.vm(f"buffer_store_dwordx4 {vr(vTag)}, v{vL16}, {sr(WS, 4)}, s{sF3w} offen sc1")
    a("s_mov_b64 exec, -1")
    e.run(stamp("flag3 sent"))
    for b in range(1, 6):
        e.run(OG(b))
    h3_loads = [("vm", f"buffer_load_dword v{va}, v{vF128}, {sr(WS, 4)}, s{sF3r} offen sc1", "h3")]
    poll("h3", h3_loads, h2_check, exec_mask="0xff")
    e.run(stamp("h3 ok"))

    HF, OA, OB = XF, 128, 160
    for n in range(24):
        m, F = divmod(n, 3)
        off = f" offset:{1024 * F}" if F else ""
        e.vm(f"buffer_load_dwordx4 {vr(HF + 4 * n)}, v{vL16}, {sr(WS, 4)}, s{sHr + m} offen{off} sc1", f"H{n}")
        if n == 3:
            a("s_barrier")

    def oreg(n, et):
        return ar((n * 5 + et) * 4) if n < 12 else vr(OB + 20 * (n % 4) + 4 * et)

    def oreads(n):
        out = []
        for et in range(5):
            for half in range(2):
                off = (n % 12) * 5120 + half * 2560 + 8 * et
                dst = ar((n * 5 + et) * 4 + 2 * half, 2) if n < 12 else vr(OB + 20 * (n % 4) + 4 * et + 2 * half, 2)
                out.append(("ds", f"ds_read_b64_tr_b16 {dst}, v{vOr + n // 12} offset:{off}", f"OR{n}" if (et == 4 and half) else None))
        return out

    for n in range(3):
        e.run(oreads(n))
    for n in range(24):
        main = []
        for et in range(5):
            m = f"v_mfma_f32_16x16x32_bf16 {vr(OA + 4 * et)}, {oreg(n, et)}, {vr(HF + 4 * n)}, {'0' if n == 0 else vr(OA + 4 * et)}"
            main.append([("wait", f"H{n}", f"OR{n}"), m] if et == 0 else m)
        e.run(spread(main, (oreads(n + 3) if n + 3 < 24 else [], 0.2, 1.0)))
    e.run(stamp("p3 mfma done"))
    PK = OB
    for k in range(10):
        a(f"v_cvt_pk_bf16_f32 v{PK + k}, v{OA + 2 * k}, v{OA + 2 * k + 1}")
    opol = cfg.get("out_pol", "")
    e.vm(f"buffer_store_dwordx4 {vr(PK)}, v{vOut}, {sr(OUT, 4)}, 0 offen{opol}")
    e.vm(f"buffer_store_dwordx4 {vr(PK + 4)}, v{vOut}, {sr(OUT, 4)}, 0 offen offset:16{opol}")
    e.vm(f"buffer_store_dwordx2 {vr(PK + 8, 2)}, v{vOut}, {sr(OUT, 4)}, 0 offen offset:32{opol}")
    if probe is not None:
        e.drain(vm=True)
        e.run(stamp("out done"))
        a("s_nop 4")
        a(f"v_readlane_b32 s{t0}, v{vStamp}, 0")
        a(f"v_readlane_b32 s{t1}, v{vStamp}, 1")
        a("s_nop 4")
        a(f"s_sub_u32 s{t1}, s{t1}, s{t0}")
        a(f"s_lshl_b32 s{t1}, s{t1}, 2")
        a(f"s_add_u32 s{t1}, s{t1}, 5000")
        a(f"s_min_u32 s{t1}, s{t1}, 100000")
        a("L_pad:")
        a(f"s_memrealtime {sr(c0)}")
        a("s_waitcnt lgkmcnt(0)")
        a(f"s_sub_u32 s{t2}, s{c0}, s{t0}")
        a(f"s_cmp_lt_u32 s{t2}, s{t1}")
        a("s_cbranch_scc1 L_pad")
    if stamps:
        e.drain(vm=True)
        e.run(stamp("out done"))
        a(f"s_memtime {sr(c0)}")
        a("s_waitcnt lgkmcnt(0)")
        a(f"v_writelane_b32 v{vStamp}, s{c0}, 63")
        a(f"s_getreg_b32 s{t0}, hwreg(HW_REG_XCC_ID, 0, 4)")
        a(f"v_writelane_b32 v{vStamp}, s{t0}, 61")
        a(f"s_lshl2_add_u32 s{t0}, s2, s{sw}")
        a(f"s_lshl_b32 s{t0}, s{t0}, 8")
        a(f"s_add_u32 s{t0}, s{t0}, {STAMPS}")
        a(f"v_lshlrev_b32 v{va}, 2, v{vl}")
        a(f"buffer_store_dword v{vStamp}, v{va}, {sr(WS, 4)}, s{t0} offen")
    a("L_end:")
    a("s_endpgm")

    body, added = fix_hazards(e.lines)
    head = open("standalone__mixer_gmlp__prompt.s.ref").read().split("; Override launch")[0]
    txt = head + f"; @launch grid=(256,1,1) block=(256,1,1) lds={LDS_BYTES}\n"
    txt += '.amdgcn_target "amdgcn-amd-amdhsa--gfx950"\n.text\n'
    txt += f".globl {NAME}\n.p2align 8\n.type {NAME},@function\n{NAME}:\n"
    txt += "\n".join(("" if l.endswith(":") else "    ") + l for l in body) + "\n"
    txt += f'.section .rodata,"a"\n.p2align 6\n.amdhsa_kernel {NAME}\n'
    txt += ("  .amdhsa_next_free_vgpr 512\n  .amdhsa_next_free_sgpr 102\n  .amdhsa_accum_offset 256\n"
            "  .amdhsa_group_segment_fixed_size 0\n  .amdhsa_kernarg_size 64\n  .amdhsa_user_sgpr_count 2\n"
            "  .amdhsa_user_sgpr_kernarg_segment_ptr 1\n  .amdhsa_system_sgpr_workgroup_id_x 1\n.end_amdhsa_kernel\n")
    return txt, cfg.get("_names", []), added


if __name__ == "__main__":
    cfg = eval(sys.argv[2]) if len(sys.argv) > 2 else {}
    txt, names, added = gen(cfg)
    open(sys.argv[1], "w").write(txt)
    print("lines", txt.count("\n"), "nops added", added)
```
